```python
import torch

def _softmax(x, axis=-1):
    return torch.softmax(x, dim=axis)

def _gelu(x):
    return torch.nn.functional.gelu(x, approximate='tanh')

def _silu(x):
    return torch.nn.functional.silu(x)

def _sigmoid(x):
    return torch.sigmoid(x)

def _layernorm(x, axis=-1, eps=1e-05):
    m = x.mean(dim=axis, keepdim=True)
    v = x.var(dim=axis, keepdim=True, unbiased=False)
    return (x - m) / torch.sqrt(v + eps)

def _scatter_add(tgt, idx, src, axis=0):
    return tgt.clone().index_add_(axis, idx, src)

def _segment_sum(src, seg, n):
    out = torch.zeros((n,) + src.shape[1:], dtype=src.dtype)
    return out.index_add_(0, seg, src)

def _pad(x, pw):
    flat = tuple((v for pair in reversed(pw) for v in pair))
    return torch.nn.functional.pad(x, flat)
kernel_name = 'adaLN_cond__spectral_fnet__geglu_ffn__prompt'

def setup_inputs():

    _w = lambda a: (lambda t: t.to(torch.bfloat16) if t.is_floating_point() else t)(torch.as_tensor(a))

    def _A_setup():
        B, S, D = (1, 2048, 448)
        ns = torch.arange(S)[:, None] * torch.arange(S)[None, :]
        nd = torch.arange(D)[:, None] * torch.arange(D)[None, :]
        Ws_re = torch.cos(-2.0 * torch.pi * ns / S).to(float)
        Ws_im = torch.sin(-2.0 * torch.pi * ns / S).to(float)
        Wd_re = torch.cos(-2.0 * torch.pi * nd / D).to(float)
        Wd_im = torch.sin(-2.0 * torch.pi * nd / D).to(float)
        return {'x': _w((lambda *s: torch.randn(*s, dtype=torch.bfloat16) * 0.05)(B, S, D)), 'dft_seq_re': _w(Ws_re), 'dft_seq_im': _w(Ws_im), 'dft_hid_re': _w(Wd_re), 'dft_hid_im': _w(Wd_im)}
    _A_in = _A_setup()

    def _B_setup():
        B, S, D, F = (1, 2048, 448, 1792)
        return {'x': _w((lambda *s: torch.randn(*s, dtype=torch.bfloat16) * 0.05)(B, S, D)), 'w_gate': _w((lambda *s: torch.randn(*s, dtype=torch.bfloat16) * 0.4)(D, F)), 'w_up': _w((lambda *s: torch.randn(*s, dtype=torch.bfloat16) * 0.4)(D, F)), 'w_down': _w((lambda *s: torch.randn(*s, dtype=torch.bfloat16) * 0.4)(F, D))}
    _B_in = _B_setup()
    return {'A_x': _A_in['x'], 'A_dft_seq_re': _A_in['dft_seq_re'], 'A_dft_seq_im': _A_in['dft_seq_im'], 'A_dft_hid_re': _A_in['dft_hid_re'], 'A_dft_hid_im': _A_in['dft_hid_im'], 'B_x': _B_in['x'], 'B_w_gate': _B_in['w_gate'], 'B_w_up': _B_in['w_up'], 'B_w_down': _B_in['w_down'], 'c': _w((lambda *s: torch.randn(*s, dtype=torch.bfloat16) * 0.2)(1, 448) * 8.0), 'w_mod': _w((lambda *s: torch.randn(*s, dtype=torch.bfloat16) * 0.2)(448, 6 * 448) * 448 ** (-0.5) * 8.0)}

def reference(A_x, A_dft_seq_re, A_dft_seq_im, A_dft_hid_re, A_dft_hid_im, B_x, B_w_gate, B_w_up, B_w_down, c, w_mod):

    def _A_ref(x, dft_seq_re, dft_seq_im, dft_hid_re, dft_hid_im):
        a = torch.einsum('bsd,ed->bse', x, dft_hid_re)
        b = torch.einsum('bsd,ed->bse', x, dft_hid_im)
        y = torch.einsum('ts,bse->bte', dft_seq_re, a) - torch.einsum('ts,bse->bte', dft_seq_im, b)
        return y

    def _B_ref(x, w_gate, w_up, w_down):
        return _gelu(x @ w_gate) * (x @ w_up) @ w_down
    x = A_x
    mod = (_silu(c) @ w_mod).reshape(c.shape[0], 6, 1, -1)
    sa, ca, ga, sb, cb, gb = (mod[:, 0].clone(), mod[:, 1].clone(), mod[:, 2].clone(), mod[:, 3].clone(), mod[:, 4].clone(), mod[:, 5].clone())
    h = _layernorm(x, axis=-1) * (1 + ca) + sa
    x = x + ga * _A_ref(h, A_dft_seq_re, A_dft_seq_im, A_dft_hid_re, A_dft_hid_im)
    h = _layernorm(x, axis=-1) * (1 + cb) + sb
    x = x + gb * _B_ref(h, B_w_gate, B_w_up, B_w_down)
    return x
```

```python
import re, struct

def f2u(x):
    return struct.unpack('<I', struct.pack('<f', x))[0]
def fhex(x):
    return '0x%08x' % f2u(x)

def v(a, n=1):
    return 'v%d' % a if n == 1 else 'v[%d:%d]' % (a, a + n - 1)
def a_(a, n=1):
    return 'a%d' % a if n == 1 else 'a[%d:%d]' % (a, a + n - 1)
def s(a, n=1):
    return 's%d' % a if n == 1 else 's[%d:%d]' % (a, a + n - 1)

_reg_re = re.compile(r'^(-|\|)?(abs\()?([vas])(\d+|\[(\d+):(\d+)\])\)?\|?$')
def regs_of(op):
    op = op.strip()
    if op in ('vcc', 'vcc_lo', 'vcc_hi'): return [('s', 'vcc')]
    if op in ('exec', 'exec_lo', 'exec_hi'): return [('s', 'exec')]
    if op == 'm0': return [('s', 'm0')]
    m = _reg_re.match(op)
    if not m: return []
    k = m.group(3)
    if m.group(5) is not None:
        return [(k, i) for i in range(int(m.group(5)), int(m.group(6)) + 1)]
    return [(k, int(m.group(4)))]

TRANS = ('v_exp_f32', 'v_log_f32', 'v_rcp_f32', 'v_rsq_f32', 'v_sqrt_f32', 'v_sin_f32', 'v_cos_f32')

class Ins:
    def __init__(self, text):
        self.text = text
        t = text.split(';')[0].strip()
        parts = t.split(None, 1)
        self.mn = parts[0]
        rest = parts[1] if len(parts) > 1 else ''
        ops = []; depth = 0; cur = ''
        for ch in rest:
            if ch == '[' or ch == '(': depth += 1
            if ch == ']' or ch == ')': depth -= 1
            if ch == ',' and depth == 0:
                ops.append(cur.strip()); cur = ''
            else: cur += ch
        if cur.strip(): ops.append(cur.strip())
        self.mods = ''
        if ops:
            sp = ops[-1].split(None, 1)
            ops[-1] = sp[0]
            if len(sp) > 1: self.mods = sp[1]
        self.ops = ops
        mn = self.mn
        self.kind = 'other'
        self.w = []; self.r = []
        R = lambda i: regs_of(ops[i]) if i < len(ops) else []
        allr = lambda a: [x for i in range(a, len(ops)) for x in R(i)]
        self.slots = 1
        if mn.startswith('v_mfma'):
            self.kind = 'mfma'
            self.passes = 8 if '32x32x16' in mn else 4 if '16x16x32' in mn else None
            assert self.passes, mn
            self.w = R(0); self.rab = R(1) + R(2); self.rc = R(3); self.r = self.rab + self.rc
        elif mn.startswith('v_'):
            self.kind = 'valu'
            self.w = R(0); self.r = allr(1)
            if 'permlane' in mn and 'swap' in mn:
                self.w = R(0) + R(1); self.r = R(0) + R(1)
            if mn.startswith(('v_fmac', 'v_dot2c', 'v_pk_fmac')) : self.r += R(0)
            if '_co_' in mn: self.w = R(0) + R(1); self.r = allr(2)
            if mn.startswith('v_cndmask') and len(ops) == 3: self.r += [('s', 'vcc')]
            if 'dpp' in mn or 'row_' in self.mods or 'quad_perm' in self.mods:
                self.dpp = True
                self.r += R(0)
            else: self.dpp = False
            if mn.startswith('v_writelane'): self.r += R(0)
        elif mn.startswith(('buffer_', 'global_')):
            self.kind = 'vmem'
            lds = (' lds' in (' ' + self.mods)) or 'load_lds' in mn
            self.lds = lds
            if 'load' in mn and not lds:
                self.w = R(0); self.r = allr(1)
                if 'd16' in mn: self.r += R(0)
            elif lds:
                self.r = allr(0) + [('s', 'm0')]
            elif 'atomic' in mn or 'store' in mn:
                self.r = allr(0)
                if mn.startswith('buffer_'): self.data = R(0)
                else: self.data = R(1)
                if 'atomic' in mn and 'sc0' in self.mods:
                    self.w = R(0)
            else:
                self.r = allr(0)
        elif mn.startswith('ds_'):
            self.kind = 'ds'
            if 'read' in mn or 'permute' in mn or 'swizzle' in mn:
                self.w = R(0); self.r = allr(1)
            else:
                self.r = allr(0)
        elif mn.startswith('s_'):
            self.kind = 'salu'
            if mn == 's_nop':
                self.slots = int(ops[0], 0) + 1
            elif mn.startswith(('s_cmp', 's_cbranch', 's_branch', 's_waitcnt', 's_barrier', 's_endpgm', 's_sleep', 's_setprio', 's_bitcmp')):
                self.r = allr(0)
            elif mn.startswith(('s_load', 's_memtime', 's_memrealtime', 's_buffer_load')):
                self.kind = 'smem'; self.w = R(0); self.r = allr(1)
            else:
                self.w = R(0); self.r = allr(1)
                if 'saveexec' in mn: self.w += [('s', 'exec')]

def need_states(p, c):
    n = 0
    pw = set(p.w)
    if p.kind == 'valu':
        vw = {x for x in pw if x[0] in 'va'}
        sw = {x for x in pw if x[0] == 's'}
        if c.kind == 'mfma' and vw & set(c.r): n = max(n, 2)
        if c.kind == 'valu':
            if c.dpp and vw & set(c.r): n = max(n, 2)
            if 'permlane' in c.mn and vw & set(c.r): n = max(n, 2)
            if c.mn.startswith(('v_readlane', 'v_readfirstlane')) and vw & set(c.r): n = max(n, 1)
            if p.mn.startswith(TRANS) and vw & set(c.r): n = max(n, 1)
            if sw & set(c.r):
                n = max(n, 4 if c.mn.startswith(('v_readlane', 'v_writelane')) else 2)
            if p.mn.startswith('v_dot2') and vw & (set(c.r) | set(c.w)):
                same = (p.mn == c.mn)
                srcab = set(regs_of(c.ops[1]) + regs_of(c.ops[2])) if same else None
                if not same or (vw & srcab): n = max(n, 3)
            if ('sdwa' in p.mn and 'dst_sel:WORD' in p.mods) and vw & (set(c.r) | set(c.w)): n = max(n, 1)
        if p.mn.startswith('v_dot2') and c.kind in ('vmem', 'ds', 'mfma') and vw & set(c.r): n = max(n, 3)
        if p.mn.startswith(TRANS) and c.kind in ('vmem', 'ds') and vw & set(c.r): n = max(n, 1)
        if c.kind == 'vmem' and sw & set(c.r): n = max(n, 5)
        if c.kind == 'salu' and sw & set(c.r): n = max(n, 1)
        if c.kind == 'salu' and c.mn.startswith('s_cbranch_vcc') and ('s', 'vcc') in sw: n = max(n, 1)
    elif p.kind == 'mfma':
        big = p.passes == 8
        if c.kind == 'mfma':
            if pw & set(c.rab): n = max(n, 12 if big else 8)
            if pw & set(c.rc):
                if not (p.w == c.rc and p.passes == c.passes): n = max(n, 10 if big else 6)
            elif pw & set(c.w):
                n = max(n, 10 if big else 6)
        elif c.kind in ('valu', 'vmem', 'ds'):
            if pw & (set(c.r) | set(c.w)): n = max(n, 12 if big else 8)
            if c.kind == 'valu' and set(p.rc) & set(c.w): n = max(n, 7 if big else 3)
    elif p.kind == 'salu':
        if ('s', 'm0') in pw and c.kind == 'vmem' and getattr(c, 'lds', False): n = max(n, 1)
    elif p.kind == 'vmem':
        if hasattr(p, 'data') and len(p.data) >= 3 and set(p.data) & set(c.w):
            n = max(n, 2 if c.kind == 'valu' else 1)
    return n

class Asm:
    def __init__(self):
        self.lines = []
        self.hist = []
        self.vm = []
        self.lg = []
        self.nops = 0
        self.ninstr = 0
    def raw(self, text):
        self.lines.append(text)
    def label(self, name):
        self.lines.append(name + ':')
    def comment(self, t):
        self.lines.append('    ; ' + t)
    def __call__(self, text, tag=None):
        ins = Ins(text)
        dist = 0; need = 0
        for p in reversed(self.hist[-24:]):
            k = need_states(p, ins) - dist
            need = max(need, k)
            dist += p.slots
            if dist >= 20: break
        if need > 0:
            nop = Ins('s_nop %d' % (need - 1))
            self.lines.append('    s_nop %d' % (need - 1))
            self.hist.append(nop); self.nops += 1
        self.lines.append('    ' + text)
        self.hist.append(ins); self.ninstr += 1
        if ins.kind == 'vmem': self.vm.append(tag)
        if ins.kind == 'ds': self.lg.append(tag)
        if ins.mn == 's_waitcnt':
            m = re.search(r'vmcnt\((\d+)\)', text)
            if m:
                n = int(m.group(1)); self.vm = self.vm[len(self.vm) - n:] if n else []
            m = re.search(r'lgkmcnt\((\d+)\)', text)
            if m:
                n = int(m.group(1)); self.lg = self.lg[len(self.lg) - n:] if n else []
        return ins
    def _cnt(self, lst, tag):
        idx = [i for i, t in enumerate(lst) if t == tag]
        if not idx: return None
        return len(lst) - 1 - idx[-1]
    def wait_vm(self, tag):
        n = self._cnt(self.vm, tag)
        if n is None: return
        assert n <= 63, n
        self('s_waitcnt vmcnt(%d)' % n)
    def wait_lg(self, tag):
        n = self._cnt(self.lg, tag)
        if n is None: return
        self('s_waitcnt lgkmcnt(%d)' % min(n, 15))
    def flush_hazards(self):
        dist = 0; need = 0
        for p in reversed(self.hist[-24:]):
            k = 0
            if p.kind == 'mfma': k = 12 if p.passes == 8 else 8
            elif p.kind == 'valu': k = 5 if any(x[0] == 's' for x in p.w) else (3 if p.mn.startswith('v_dot2') else 2)
            elif p.kind == 'vmem' and hasattr(p, 'data'): k = 2
            elif p.kind == 'salu' and ('s', 'm0') in p.w: k = 1
            need = max(need, k - dist)
            dist += p.slots
        if need > 0: self('s_nop %d' % (need - 1))
    def text(self):
        return '\n'.join(self.lines) + '\n'
```

```python
import math
from asmlib import *
from gen1 import *

def pk_bc(reg):
    return v(reg & ~1, 2), reg & 1

def k2(A):
    header(A, 'k2_kernel')
    ST = Stamper(A, 1)
    ST(0)
    A('s_cmp_ge_u32 s2, 256')
    A('s_cbranch_scc1 L_k2_end')
    A('s_load_dwordx2 s[4:5], s[0:1], 0')
    A('s_load_dwordx2 s[6:7], s[0:1], 104')
    A('v_lshrrev_b32 v2, 6, v0')
    A('v_and_b32 v1, 63, v0')
    A('v_readfirstlane_b32 s20, v2')
    A('s_and_b32 s12, s2, 7')
    A('s_lshr_b32 s13, s2, 3')
    A('s_lshl_b32 s21, s12, 5')
    A('s_add_u32 s21, s21, s13')
    A('s_lshr_b32 s22, s21, 3')
    A('s_and_b32 s23, s21, 7')
    A('v_lshrrev_b32 v5, 4, v1')
    A('v_and_b32 v6, 15, v1')
    A('s_lshl_b32 s18, s20, 4')
    A('v_add_u32 v7, s18, v6')
    A('v_lshlrev_b32 v2, 13, v5')
    A('v_lshl_add_u32 v2, v7, 4, v2')
    A('s_lshl_b32 s32, s22, 16')
    A('s_add_u32 s33, s32, 4096')
    A('s_add_u32 s34, s32, 32768')
    A('s_add_u32 s35, s32, 36864')
    A('v_lshlrev_b32 v3, 2, v7')
    A('s_lshl_b32 s44, s23, 8')
    A('s_add_u32 s44, s44, s22')
    A('s_sub_u32 s45, s44, 992')
    A('s_and_b32 s46, s21, 0xfc')
    A('s_cmp_eq_u32 s46, 4')
    A('s_cselect_b32 s44, s45, s44')
    A('s_cselect_b32 s47, 0, -1')
    A('s_cselect_b32 s48, 0, %s' % fhex(-0.25))
    A('s_cmp_eq_u32 s46, 0')
    A('s_cselect_b32 s49, 0, -1')
    A('v_lshrrev_b32 v56, 3, v1')
    A('v_and_b32 v57, 7, v1')
    A('v_lshrrev_b32 v58, 1, v57')
    A('v_lshl_add_u32 v58, v58, 6, s44')
    A('v_sub_u32 v59, 2048, v58')
    A('v_cmp_eq_u32 vcc, 0, v58')
    A('v_mov_b32 v60, 1024')
    A('v_cndmask_b32 v59, v59, v60, vcc')
    A('v_and_b32 v60, 1, v57')
    A('v_cmp_eq_u32 vcc, 1, v60')
    A('v_cndmask_b32 v58, v58, v59, vcc')
    A('v_mul_u32_u24 v58, 896, v58')
    A('v_lshl_add_u32 v58, v56, 4, v58')
    A('s_mul_i32 s36, s20, 224')
    A('v_lshlrev_b32 v59, 5, v56')
    A('s_mul_i32 s37, s20, 448')
    A('s_add_u32 s37, s37, 0x%x' % (WS_MOD + 2 * 1792))
    A('s_add_u32 s38, s37, 3584')
    A('s_mov_b32 s39, 0x%x' % WS_MOD)
    A('s_waitcnt lgkmcnt(0)')
    ST(1)
    srd(A, 28, 6, 0x1000000)
    G = 64
    for ks in range(2):
        for i in range(8):
            A('buffer_load_dwordx4 %s, v2, s[28:31], %s offen offset:%d sc1' % (v(G + (ks * 8 + i) * 4, 4), s(32 + 2 * ks + (i >> 2)), (i & 3) * 1024), tag='u%d' % (ks * 8 + i))
    SQ = 40
    for q in range(7):
        A('buffer_load_dword %s, v3, s[28:31], s39 offen offset:%d sc1' % (v(SQ + q), 1792 + 256 * q), tag='ca')
    SA = 48
    for q in range(7):
        A('buffer_load_dword %s, v3, s[28:31], s39 offen offset:%d sc1' % (v(SA + q), 256 * q), tag='sa')
    srd(A, 24, 4, 1835008)
    XV = 184
    for p in range(2):
        A('buffer_load_dwordx4 %s, v58, s[24:27], s36 offen offset:%d' % (v(XV + 4 * p, 4), 128 * p), tag='x')
    GA, SB, CB = 192, 208, 224
    for p in range(2):
        for h in range(2):
            A('buffer_load_dwordx4 %s, v59, s[28:31], s37 offen offset:%d sc1' % (v(GA + 8 * p + 4 * h, 4), 256 * p + 16 * h), tag='mv')
            A('buffer_load_dwordx4 %s, v59, s[28:31], s37 offen offset:%d sc1' % (v(SB + 8 * p + 4 * h, 4), 1792 + 256 * p + 16 * h), tag='mv')
            A('buffer_load_dwordx4 %s, v59, s[28:31], s38 offen offset:%d sc1' % (v(CB + 8 * p + 4 * h, 4), 256 * p + 16 * h), tag='mv')
    T = 128
    A('v_lshrrev_b32 v240, 2, v6')
    A('v_lshl_add_u32 v240, v240, 6, s44')
    A('v_and_b32 v241, 3, v6')
    A('s_cmp_eq_u32 s21, 0')
    A('s_cselect_b32 s50, 2, 99')
    A('v_cmp_eq_u32 s[52:53], s50, v6')
    A('v_mov_b32 v242, 1024')
    A('v_cndmask_b32 v240, v240, v242, s[52:53]')
    A('v_cvt_f32_u32 v240, v240')
    A('v_mul_f32 v240, %s, v240' % fhex(1 / 2048))
    A('v_cmp_eq_u32 vcc, 1, v241')
    A('v_mov_b32 v242, %s' % fhex(0.25))
    A('v_cndmask_b32 v242, 0, v242, vcc')
    A('v_cvt_f32_u32 v243, v5')
    A('v_mul_f32 v243, %s, v243' % fhex(8.0))
    A('v_fma_f32 v242, v240, v243, v242')
    A('v_add_f32 v243, s48, v242')
    A('v_cmp_gt_u32 vcc, 2, v241')
    A('s_or_b64 s[52:53], s[52:53], vcc')
    A('v_mov_b32 v244, s47')
    A('v_mov_b32 v245, s49')
    A('v_cndmask_b32 v244, 0, v244, s[52:53]')
    A('v_cndmask_b32 v245, 0, v245, vcc')
    for ks in range(2):
        for i in range(8):
            A('v_fmamk_f32 %s, v240, %s, %s' % (v(T + 8 * ks + i), fhex(float(i)), v(242 + ks)))
    for i in range(16): A('v_cos_f32 %s, %s' % (v(T + i), v(T + i)))
    for i in range(8): A('v_cvt_pk_bf16_f32 %s, %s, %s' % (v(8 + i), v(T + 2 * i), v(T + 2 * i + 1)))
    for i in range(8): A('v_and_b32 %s, %s, %s' % (v(8 + i), v(244 + (i >> 2)), v(8 + i)))
    A('v_cvt_f32_u32 v240, v7')
    for n in range(1, 4):
        A('v_mul_f32 %s, %s, v240' % (v(T + n), fhex(n / 448)))
    for n in range(1, 4):
        A('v_cos_f32 %s, %s' % (v(30 + 2 * n), v(T + n)))
        A('v_sin_f32 %s, %s' % (v(31 + 2 * n), v(T + n)))
    A('v_mul_f32 v240, %s, v240' % fhex(1 / 64))
    A('v_cvt_f32_u32 v241, v5')
    A('v_mul_f32 v241, 4.0, v241')
    A('v_mul_f32 v241, v240, v241')
    for ks in range(4):
        for ii in range(4):
            A('v_fmamk_f32 %s, v240, %s, v241' % (v(T + ii), fhex(float(16 * ks + ii))))
        for ii in range(4):
            A('v_cos_f32 %s, %s' % (v(T + 4 + ii), v(T + ii)))
            A('v_sin_f32 %s, %s' % (v(T + 8 + ii), v(T + ii)))
        for ii in range(4):
            A('v_cvt_pk_bf16_f32 %s, %s, %s' % (v(16 + 4 * ks + ii), v(T + 4 + ii), v(T + 8 + ii)))
    BD, YB, PS = 0, 8704, 25600
    YS = 1856
    A('v_mul_u32_u24 v61, %d, v5' % (4 * 272))
    A('v_add_u32 v61, v61, v3')
    A('v_mul_u32_u24 v62, 272, v6')
    A('v_lshl_add_u32 v62, v5, 4, v62')
    A('v_mul_u32_u24 v240, %d, v5' % (2 * YS))
    A('v_lshrrev_b32 v241, 1, v5')
    A('v_lshl_add_u32 v240, v241, 4, v240')
    A('v_mul_u32_u24 v241, 28, v7')
    A('v_add_u32 v247, v240, v241')
    A('v_cmp_eq_u32 vcc, 0, v7')
    A('v_mov_b32 v242, 1792')
    A('v_cndmask_b32 v242, 0, v242, vcc')
    A('v_add_u32 v246, v247, v242')
    A('v_add_u32 v240, %d, v240' % YS)
    A('s_cselect_b32 s50, 0, 99' if False else 's_cmp_eq_u32 s21, 0')
    A('s_cselect_b32 s50, 0, 99')
    A('v_cmp_eq_u32 s[52:53], s50, v5')
    A('v_mov_b32 v243, %d' % (8 * YS + 32))
    A('v_cndmask_b32 v240, v240, v243, s[52:53]')
    A('v_sub_u32 v249, v240, v241')
    A('v_add_u32 v249, %d, v249' % ((448 - 3) * 4))
    A('v_sub_u32 v248, v249, v242')
    A('v_lshl_add_u32 v250, v5, 2, v241')
    A('v_sub_u32 v251, 1792, v250')
    A('v_mul_u32_u24 v63, %d, v57' % YS)
    A('v_lshrrev_b32 v240, 2, v57')
    A('v_lshl_add_u32 v63, v240, 4, v63')
    A('v_add_u32 v63, v63, v59')
    A('s_mul_i32 s50, s20, 448')
    A('v_add_u32 v63, s50, v63')
    A('v_lshlrev_b32 v253, 5, v57')
    A('v_lshl_add_u32 v252, v5, 4, v253')
    A('s_lshl_b32 s50, s20, 2')
    A('v_add_u32 v252, s50, v252')
    A('v_lshlrev_b32 v254, 9, v56')
    A('v_lshl_add_u32 v254, v57, 4, v254')
    A('s_lshr_b32 s50, s21, 2')
    A('s_mul_i32 s56, s50, 28672')
    A('s_and_b32 s50, s21, 3')
    A('s_lshl_b32 s50, s50, 7')
    A('s_add_u32 s56, s56, s50')
    A('s_mul_i32 s50, s20, 7168')
    A('s_add_u32 s56, s56, s50')
    A('s_add_u32 s58, s56, 0x%x' % WS_X2)
    A('s_add_u32 s56, s56, 0x%x' % WS_H2)
    A('s_add_u32 s57, s56, 4096')
    A('s_add_u32 s59, s58, 4096')
    A('s_mov_b32 s60, 0x05040100')
    A('s_mov_b32 s61, 0x07060302')
    C = [math.cos(2 * math.pi * k / 7) for k in range(4)]
    Sn = [math.sin(2 * math.pi * k / 7) for k in range(4)]
    cs = {('c', 1): 62, ('c', 2): 63, ('c', 3): 64, ('s', 1): 65, ('s', 2): 66, ('s', 3): 67}
    for (kind, k), r in cs.items():
        A('s_mov_b32 %s, %s' % (s(r), fhex(C[k] if kind == 'c' else Sn[k])))
    ST(2)
    B0 = 128; B1 = G; DQ = 156
    for ks in range(2):
        for a in range(4):
            A.wait_vm('u%d' % (ks * 8 + 2 * a + 1))
            ga = G + (ks * 8 + 2 * a) * 4; gb = ga + 4
            for q in range(7):
                A('v_perm_b32 %s, %s, %s, %s' % (v((B0 if ks == 0 else B1) + 4 * q + a), v(gb + (q >> 1)), v(ga + (q >> 1)), s(60 + (q & 1))))
        for q in range(7):
            A('v_mfma_f32_16x16x32_bf16 %s, %s, %s, %s' % (v(DQ + 4 * q, 4), v(8 + 4 * ks, 4), v((B0 if ks == 0 else B1) + 4 * q, 4), '0' if ks == 0 else v(DQ + 4 * q, 4)))
    ST(3)
    A.wait_vm('sa')
    for q in range(7): A('v_and_b32 %s, 0xffff0000, %s' % (v(SQ + q), v(SQ + q)))
    Z = lambda q: v(DQ + 4 * q, 2)
    for q in range(7):
        pr, sel = pk_bc(SQ + q)
        A('v_pk_mul_f32 %s, %s, %s op_sel:[0,%d] op_sel_hi:[1,%d]' % (Z(q), Z(q), pr, sel, sel))
    A('s_cmp_lg_u32 s21, 0')
    A('s_cbranch_scc1 L_k2_nospec1')
    A('s_mov_b64 exec, 0xffff')
    W = 96
    for q in range(7):
        A('v_and_b32 %s, 0xffff0000, %s' % (v(SA + q), v(SA + q)))
        A('v_fmac_f32 %s, %s, %s' % (v(DQ + 4 * q), fhex(2048.0), v(SA + q)))
        A('v_mul_f32 %s, %s, %s' % (v(W + q), v(DQ + 4 * q + 2), v(SQ + q)))
    for k in range(1, 4):
        A('v_add_f32 %s, %s, %s' % (v(W + 7 + k), v(W + k), v(W + 7 - k)))
        A('v_sub_f32 %s, %s, %s' % (v(W + 10 + k), v(W + k), v(W + 7 - k)))
    A('v_add_f32 %s, %s, %s' % (v(W + 14), v(W), v(W + 8)))
    A('v_add_f32 %s, %s, %s' % (v(W + 14), v(W + 14), v(W + 9)))
    A('v_add_f32 %s, %s, %s' % (v(W + 14), v(W + 14), v(W + 10)))
    A('v_cvt_pk_bf16_f32 %s, %s, 0' % (v(W + 14), v(W + 14)))
    A('ds_write_b32 v61, %s offset:%d' % (v(W + 14), BD + 19 * 272))
    def cidx(n, k):
        r = (n * k) % 7
        return (r, 1) if r <= 3 else (7 - r, -1)
    for n in range(1, 4):
        ar, br = W + 15, W + 16
        for k in range(1, 4):
            r, sg = cidx(n, k)
            A('v_fma_f32 %s, %s, %s, %s' % (v(ar), s(cs[('c', r)]), v(W + 7 + k), v(W) if k == 1 else v(ar)))
            if k == 1: A('v_mul_f32 %s, %s, %s' % (v(br), s(cs[('s', r)]), v(W + 10 + k)))
            else: A('v_fma_f32 %s, %s%s, %s, %s' % (v(br), '-' if sg < 0 else '', s(cs[('s', r)]), v(W + 10 + k), v(br)))
        Cn, Sr = 30 + 2 * n, 31 + 2 * n
        A('v_mul_f32 %s, %s, %s' % (v(W + 17), v(ar), v(Cn)))
        A('v_mul_f32 %s, %s, %s' % (v(W + 18), v(br), v(Cn)))
        A('v_fma_f32 %s, -%s, %s, %s' % (v(W + 17), v(br), v(Sr), v(W + 17)))
        A('v_fma_f32 %s, -%s, %s, -%s' % (v(W + 18), v(ar), v(Sr), v(W + 18)))
        A('v_cvt_pk_bf16_f32 %s, %s, %s' % (v(W + 19 + n), v(W + 17), v(W + 18)))
        A('ds_write_b32 v61, %s offset:%d' % (v(W + 19 + n), BD + (19 + 4 * n) * 272))
    A('s_mov_b64 exec, -1')
    A.label('L_k2_nospec1')
    A.lg = []
    P = lambda k: v(128 + 2 * (k - 1), 2)
    M = lambda k: v(134 + 2 * (k - 1), 2)
    AA = lambda n: v(140 + 2 * (n - 1), 2)
    BB = lambda n: v(146 + 2 * (n - 1), 2)
    for k in range(1, 4):
        A('v_pk_add_f32 %s, %s, %s' % (P(k), Z(k), Z(7 - k)))
        A('v_pk_add_f32 %s, %s, %s neg_lo:[0,1] neg_hi:[0,1]' % (M(k), Z(k), Z(7 - k)))
    def sp(kind, r):
        reg = cs[(kind, r)]
        return s(reg & ~1, 2), reg & 1
    for k in range(1, 4):
        for n in range(1, 4):
            r, sg = cidx(n, k)
            pr, sel = sp('c', r)
            A('v_pk_fma_f32 %s, %s, %s, %s op_sel:[0,%d,0] op_sel_hi:[1,%d,1]' % (AA(n), P(k), pr, Z(0) if k == 1 else AA(n), sel, sel))
            pr, sel = sp('s', r)
            if k == 1:
                A('v_pk_mul_f32 %s, %s, %s op_sel:[0,%d] op_sel_hi:[1,%d]' % (BB(n), M(k), pr, sel, sel))
            else:
                neg = ' neg_lo:[1,0,0] neg_hi:[1,0,0]' if sg < 0 else ''
                A('v_pk_fma_f32 %s, %s, %s, %s op_sel:[0,%d,0] op_sel_hi:[1,%d,1]%s' % (BB(n), M(k), pr, BB(n), sel, sel, neg))
        A('v_pk_add_f32 v[152:153], %s, %s' % (Z(0) if k == 1 else 'v[152:153]', P(k)))
    A('v_cvt_pk_bf16_f32 v152, v152, v153')
    A('ds_write_b32 v61, v152 offset:%d' % (BD + 3 * 272))
    XP = lambda n: v(96 + 2 * (n - 1), 2)
    XM = lambda n: v(102 + 2 * (n - 1), 2)
    TP = lambda n: v(108 + 2 * (n - 1), 2)
    TM = lambda n: v(114 + 2 * (n - 1), 2)
    for n in range(1, 4):
        A('v_pk_add_f32 %s, %s, %s op_sel:[0,1] op_sel_hi:[1,0] neg_hi:[0,1]' % (XP(n), AA(n), BB(n)))
        A('v_pk_add_f32 %s, %s, %s op_sel:[0,1] op_sel_hi:[1,0] neg_lo:[0,1]' % (XM(n), AA(n), BB(n)))
    for n in range(1, 4):
        tw = v(30 + 2 * n, 2)
        A('v_pk_mul_f32 %s, %s, %s op_sel:[0,0] op_sel_hi:[1,0]' % (TP(n), XP(n), tw))
        A('v_pk_mul_f32 %s, %s, %s op_sel:[0,0] op_sel_hi:[1,0]' % (TM(n), XM(n), tw))
    for n in range(1, 4):
        tw = v(30 + 2 * n, 2)
        A('v_pk_fma_f32 %s, %s, %s, %s op_sel:[1,1,0] op_sel_hi:[0,1,1] neg_hi:[1,0,0]' % (TP(n), XP(n), tw, TP(n)))
        A('v_pk_fma_f32 %s, %s, %s, %s op_sel:[1,1,0] op_sel_hi:[0,1,1] neg_lo:[1,0,0]' % (TM(n), XM(n), tw, TM(n)))
    for n in range(1, 4):
        r = 108 + 2 * (n - 1)
        A('v_cvt_pk_bf16_f32 %s, %s, %s' % (v(r), v(r), v(r + 1)))
        A('ds_write_b32 v61, %s offset:%d' % (v(r), BD + (16 + n - 1) * 272))
        r = 114 + 2 * (n - 1)
        A('v_cvt_pk_bf16_f32 %s, %s, %s' % (v(r), v(r), v(r + 1)))
        A('ds_write_b32 v61, %s offset:%d' % (v(r), BD + (3 - n) * 272))
    A('s_waitcnt lgkmcnt(0)')
    A('s_barrier')
    ST(4)
    for ks in range(4):
        for t in range(2):
            A('ds_read_b128 %s, v62 offset:%d' % (v(64 + 16 * t + 4 * ks, 4), BD + t * 16 * 272 + 64 * ks), tag='d%d%d' % (ks, t))
    A.wait_vm('mv')
    XF = 128
    def unpack_some(lst):
        for ins in lst: A(ins)
    up = []
    for i in range(8):
        up.append('v_lshlrev_b32 %s, 16, %s' % (v(XF + 2 * i), v(XV + i)))
        up.append('v_and_b32 %s, 0xffff0000, %s' % (v(XF + 2 * i + 1), v(XV + i)))
    for i in range(16): up.append('v_and_b32 %s, 0xffff0000, %s' % (v(GA + i), v(GA + i)))
    up2 = []
    for i in range(32): up2.append('v_and_b32 %s, 0xffff0000, %s' % (v(SB + i), v(SB + i)))
    unpack_some(up[:8]); up = up[8:]
    for ks in range(4):
        for t in range(2):
            A.wait_lg('d%d%d' % (ks, t))
            A('v_mfma_f32_16x16x32_bf16 %s, %s, %s, %s' % (v(96 + 4 * t, 4), v(64 + 16 * t + 4 * ks, 4), v(16 + 4 * ks, 4), '0' if ks == 0 else v(96 + 4 * t, 4)))
            unpack_some(up[:2]); up = up[2:]
    unpack_some(up)
    for n in range(7):
        A('ds_write_b32 %s, %s offset:%d' % ('v246' if n < 3 else 'v247', v(96 + n), YB - 12 + 4 * n))
        A('ds_write_b32 %s, %s offset:%d' % ('v248' if n <= 3 else 'v249', v(96 + n), YB + 4 * (6 - n)))
    A('s_cmp_lg_u32 s21, 0')
    A('s_cbranch_scc1 L_k2_nospec2')
    A('ds_write_b32 v250, v103 offset:%d' % (YB + YS))
    A('s_mov_b32 exec_lo, 0xffff0000')
    A('ds_write_b32 v251, v103 offset:%d' % (YB + YS))
    A('s_mov_b64 exec, -1')
    A.label('L_k2_nospec2')
    unpack_some(up2[:16])
    A('s_waitcnt lgkmcnt(0)')
    A('s_barrier')
    ST(5)
    YV = 64
    for p in range(2):
        for h in range(2):
            A('ds_read_b128 %s, v63 offset:%d' % (v(YV + 8 * p + 4 * h, 4), YB + 256 * p + 16 * h), tag='y%d' % p)
    unpack_some(up2[16:])
    for p in range(2):
        A.wait_lg('y%d' % p)
        if p == 1: A('s_mov_b32 exec_hi, 0xffff')
        for i in range(4):
            r = 8 * p + 2 * i
            A('v_pk_fma_f32 %s, %s, %s, %s' % (v(YV + r, 2), v(YV + r, 2), v(GA + r, 2), v(XF + r, 2)))
        for i in range(4):
            r = 8 * p + 2 * i
            if p == 0 and i == 0:
                A('v_pk_add_f32 v[80:81], %s, %s' % (v(YV, 2), v(YV + 2, 2)))
                A('v_pk_mul_f32 v[82:83], %s, %s' % (v(YV, 2), v(YV, 2)))
            else:
                if not (p == 0 and i == 1): A('v_pk_add_f32 v[80:81], v[80:81], %s' % v(YV + r, 2))
                A('v_pk_fma_f32 v[82:83], %s, %s, v[82:83]' % (v(YV + r, 2), v(YV + r, 2)))
    A('s_mov_b64 exec, -1')
    A('v_add_f32 v80, v80, v81')
    A('v_add_f32 v82, v82, v83')
    A('v_add_f32_dpp v80, v80, v80 row_ror:8 row_mask:0xf bank_mask:0xf')
    A('v_add_f32_dpp v82, v82, v82 row_ror:8 row_mask:0xf bank_mask:0xf')
    A('v_permlane16_swap_b32 v80, v82')
    A('v_add_f32 v80, v80, v82')
    A('v_mov_b32 v82, v80')
    A('v_permlane32_swap_b32 v80, v82')
    A('v_add_f32 v80, v80, v82')
    A('s_mov_b64 exec, 0x00ff00ff')
    A('ds_write_b32 v252, v80 offset:%d' % PS)
    A('s_mov_b64 exec, -1')
    for i in range(8): A('v_cvt_pk_bf16_f32 %s, %s, %s' % (v(96 + i), v(YV + 2 * i), v(YV + 2 * i + 1)))
    A('s_waitcnt lgkmcnt(0)')
    A('s_barrier')
    A('ds_read_b128 v[84:87], v253 offset:%d' % PS)
    A('ds_read_b128 v[88:91], v253 offset:%d' % (PS + 16))
    A('buffer_store_dwordx4 v[96:99], v254, s[28:31], s58 offen sc1')
    A('s_mov_b32 exec_hi, 0xffff')
    A('buffer_store_dwordx4 v[100:103], v254, s[28:31], s59 offen sc1')
    A('s_mov_b64 exec, -1')
    A('s_waitcnt lgkmcnt(0)')
    A('v_pk_add_f32 v[84:85], v[84:85], v[86:87]')
    A('v_pk_add_f32 v[88:89], v[88:89], v[90:91]')
    A('v_add_f32 v84, v84, v85')
    A('v_add_f32 v88, v88, v89')
    A('v_mul_f32 v85, %s, v84' % fhex(-1 / 448))
    A('v_mul_f32 v88, %s, v88' % fhex(1 / 448))
    A('v_fma_f32 v88, -v85, v85, v88')
    A('v_max_f32 v88, 0, v88')
    A('v_add_f32 v88, %s, v88' % fhex(1e-5))
    A('v_rsq_f32 v84, v88')
    A('v_mul_f32 v85, v85, v84')
    for p in range(2):
        for i in range(4):
            r = 8 * p + 2 * i
            A('v_pk_fma_f32 %s, %s, v[84:85], v[84:85] op_sel:[0,0,1] op_sel_hi:[1,0,1]' % (v(YV + r, 2), v(YV + r, 2)))
        for i in range(4):
            r = 8 * p + 2 * i
            A('v_pk_fma_f32 %s, %s, %s, %s' % (v(YV + r, 2), v(YV + r, 2), v(CB + r, 2), v(SB + r, 2)))
        for i in range(4):
            A('v_cvt_pk_bf16_f32 %s, %s, %s' % (v(104 + 4 * p + i), v(YV + 8 * p + 2 * i), v(YV + 8 * p + 2 * i + 1)))
        if p == 1: A('s_mov_b32 exec_hi, 0xffff')
        A('buffer_store_dwordx4 %s, v254, s[28:31], %s offen sc1' % (v(104 + 4 * p, 4), s(56 + p)))
    A('s_mov_b64 exec, -1')
    ST(6)
    if STAMPS:
        A('s_waitcnt vmcnt(0)'); ST(7)
    ST.flush(28)
    A.label('L_k2_end')
    A('s_endpgm')
```

```python
import math
from asmlib import *
from gen1 import *

K0 = -2 * math.sqrt(2 / math.pi) * LOG2E
K1c = K0 * 0.044715

def geglu_ops(acc, tmp, outr, vk1):
    ops = []
    for half in range(2):
        idx = range(4 * half, 4 * half + 4)
        t = lambda i: v(tmp + i)
        for i in idx: ops.append('v_mul_f32 %s, %s, %s' % (t(i), v(acc + i), v(acc + i)))
        for i in idx: ops.append('v_fmaak_f32 %s, %s, %s, %s' % (t(i), t(i), v(vk1), fhex(K0)))
        for i in idx: ops.append('v_mul_f32 %s, %s, %s' % (t(i), t(i), v(acc + i)))
        for i in idx:
            ops.append('v_exp_f32 %s, %s' % (t(i), t(i)))
            ops.append('v_mul_f32 %s, %s, %s' % (v(acc + i), v(acc + i), v(acc + 8 + i)))
        for i in idx: ops.append('v_add_f32 %s, 1.0, %s' % (t(i), t(i)))
        for i in idx: ops.append('v_rcp_f32 %s, %s' % (t(i), t(i)))
        for i in idx: ops.append('v_mul_f32 %s, %s, %s' % (t(i), t(i), v(acc + i)))
        for p in range(2):
            i = 4 * half + 2 * p
            ops.append('v_cvt_pk_bf16_f32 %s, %s, %s' % (v(outr + 2 * half + p), t(i), t(i + 1)))
    return ops

def cost(op):
    return 8 if op.startswith(TRANS) else 4

def k3(A):
    header(A, 'k3_kernel')
    ST = Stamper(A, 2)
    ST(0)
    A('s_cmp_ge_u32 s2, 256')
    A('s_cbranch_scc1 L_k3_end')
    A('s_load_dwordx4 s[8:11], s[0:1], 48')
    A('s_load_dwordx2 s[6:7], s[0:1], 104')
    A('v_lshrrev_b32 v2, 6, v0')
    A('v_and_b32 v1, 63, v0')
    A('v_readfirstlane_b32 s20, v2')
    A('s_and_b32 s12, s2, 7')
    A('s_lshr_b32 s13, s2, 3')
    A('s_and_b32 s14, s2, 1')
    A('s_lshl_b32 s21, s14, 5')
    A('s_add_u32 s21, s21, s13')
    A('s_mul_i32 s15, s21, 55')
    A('s_and_b32 s15, s15, 63')
    A('s_mul_i32 s15, s15, 7')
    A('s_lshr_b32 s15, s15, 6')
    A('s_lshr_b32 s16, s12, 1')
    A('s_mul_i32 s16, s16, 7')
    A('s_add_u32 s22, s15, s16')
    A('s_sub_u32 s23, 64, s21')
    A('s_lshr_b32 s17, s20, 1')
    A('v_lshrrev_b32 v3, 3, v1')
    A('v_and_b32 v4, 7, v1')
    A('v_and_b32 v5, 2, v3')
    A('s_lshl_b32 s18, s17, 2')
    A('v_xor_b32 v4, v4, v5')
    A('v_xor_b32 v4, s18, v4')
    A('v_mul_u32_u24 v3, 3584, v3')
    A('v_lshl_add_u32 v3, v4, 4, v3')
    A('v_lshlrev_b32 v6, 4, v1')
    A('v_bfe_u32 v8, v1, 4, 1')
    A('v_bfe_u32 v9, v1, 2, 2')
    A('v_lshrrev_b32 v10, 5, v1')
    A('v_mul_u32_u24 v7, 57344, v8')
    A('v_lshl_add_u32 v10, v10, 3, v9')
    A('v_lshl_add_u32 v7, v10, 7, v7')
    A('v_lshrrev_b32 v9, 1, v9')
    A('v_lshl_add_u32 v9, v8, 1, v9')
    A('v_xor_b32 v9, s20, v9')
    A('v_lshl_add_u32 v7, v9, 5, v7')
    A('v_and_b32 v8, 1, v1')
    A('v_bfe_u32 v9, v1, 1, 1')
    A('v_lshl_add_u32 v8, v8, 1, v9')
    A('v_lshl_add_u32 v7, v8, 3, v7')
    A('v_mov_b32 v11, %s' % fhex(K1c))
    A('s_waitcnt lgkmcnt(0)')
    ST(1)
    A('s_cmp_eq_u32 s17, 0')
    A('s_cselect_b32 s4, s8, s10')
    A('s_cselect_b32 s5, s9, s11')
    srd(A, 24, 4, 448 * 3584)
    srd(A, 28, 6, 0x1000000)
    RS = lambda sg: (sg * 28672 + 114688) % 143360
    def dma_block(sg):
        A('s_add_u32 s40, s21, %d' % sg)
        A('s_and_b32 s40, s40, 63')
        A('s_mul_i32 s40, s40, 28672')
        A('s_add_u32 s40, s40, s41')
        A('s_add_u32 m0, s42, %d' % RS(sg))
        for i in range(4):
            A('buffer_load_dwordx4 v6, s[28:31], s40 offen offset:%d sc1 lds' % (1024 * i), tag='h%d' % sg)
        A('s_add_u32 s40, s40, 4096')
        A('s_add_u32 m0, s42, %d' % (RS(sg) + 4096))
        for i in range(3):
            A('buffer_load_dwordx4 v6, s[28:31], s40 offen offset:%d sc1 lds' % (1024 * i), tag='h%d' % sg)
    A('s_mul_i32 s42, s20, 7168')
    A('s_add_u32 s41, s42, 0x%x' % WS_H2)
    dma_block(0)
    def load_w(areg, lab, dl):
        A('s_and_b32 s18, s20, 1')
        A('s_mul_i32 s43, s18, %d' % (224 * 3584))
        A('s_add_u32 s18, s22, %d' % dl)
        A('s_lshl_b32 s18, s18, 7')
        A('s_add_u32 s43, s43, s18')
        A('s_mul_i32 s44, s20, 28672')
        A('s_add_u32 s45, s44, 28672')
        A.label(lab)
        A('s_mov_b32 m0, s44')
        A('s_add_u32 s44, s44, 1024')
        A('buffer_load_dwordx4 v3, s[24:27], s43 offen lds')
        A('s_add_u32 s43, s43, %d' % (8 * 3584))
        A('s_cmp_lt_u32 s44, s45')
        A('s_cbranch_scc1 %s' % lab)
        A('s_waitcnt vmcnt(0)')
        A('s_barrier')
        for ks in range(28):
            for hf in range(2):
                A('ds_read_b64_tr_b16 %s, v7 offset:%d' % (a_(areg + 4 * ks + 2 * hf, 2), 2048 * ks + 512 * hf))
        A('s_waitcnt lgkmcnt(0)')
        A('s_barrier')
    load_w(0, 'L_k3_w0', 0)
    A('s_cmp_ge_u32 s23, 7')
    A('s_cbranch_scc1 L_k3_now1')
    load_w(112, 'L_k3_w1', 1)
    A.label('L_k3_now1')
    ST(2)
    for sg in range(1, 5): dma_block(sg)
    A('s_lshl_b32 s46, s22, 2')
    A('s_add_u32 s46, s46, s20')
    A('s_lshl_b32 s46, s46, 10')
    A('s_add_u32 s46, s46, 0x%x' % WS_ACT)
    TF = 16; NF = 6
    ACC = [48, 64]; TMP = 80; OUTR = 88
    A('v_add_u32 v12, %d, v6' % RS(0))
    PRE = 4
    fr = lambda n: TF + 4 * (n % NF)
    for ks in range(PRE):
        A('ds_read_b128 %s, v12 offset:%d' % (v(fr(ks), 4), 1024 * ks), tag='f%d' % ks)
    state = None
    def body(sg, wreg):
        acc = ACC[sg & 1]; pacc = ACC[(sg & 1) ^ 1]
        ops = []
        if sg > 0:
            ops = geglu_ops(pacc, TMP, OUTR, 11)
        cur = 'v%d' % (12 + (sg & 1)); nxt = 'v%d' % (12 + ((sg & 1) ^ 1))
        if sg > 0:
            pre = ['s_add_u32 s47, s21, %d' % (sg - 1), 's_lshr_b32 s48, s47, 6', 's_lshl_b32 s48, s48, 12', 's_and_b32 s47, s47, 63', 's_mul_i32 s47, s47, 114688', 's_add_u32 s47, s47, s46', 's_add_u32 s47, s47, s48']
        else: pre = []
        if sg < 6: pre.append('v_add_u32 %s, %d, v6' % (nxt, RS(sg + 1)))
        total = sum(cost(o) for o in ops); done = 0; stored = False
        for ks in range(28):
            n = sg * 28 + ks
            A.wait_lg('f%d' % n)
            A('v_mfma_f32_32x32x16_bf16 %s, %s, %s, %s' % (v(acc, 16), a_(wreg + 4 * ks, 4), v(fr(n), 4), '0' if ks == 0 else v(acc, 16)))
            k2 = ks + PRE
            if k2 < 28:
                A('ds_read_b128 %s, %s offset:%d' % (v(fr(n + PRE), 4), cur, 1024 * k2), tag='f%d' % (n + PRE))
            elif sg < 6:
                A('ds_read_b128 %s, %s offset:%d' % (v(fr(n + PRE), 4), nxt, 1024 * (k2 - 28)), tag='f%d' % (n + PRE))
            if ks < 2:
                for o in pre[:4]: A(o)
                pre = pre[4:]
            if ks >= 2:
                target = total * (ks - 1) / 23.0
                while ops and done < target:
                    o = ops.pop(0); A(o); done += cost(o)
                if not ops and sg > 0 and not stored:
                    A('buffer_store_dwordx4 %s, v6, s[28:31], s47 offen sc1' % v(OUTR, 4), tag='st'); stored = True
            if ks == 22 and sg < 6:
                A.wait_vm('h%d' % (sg + 1))
                A('s_barrier')
                if sg >= 1 and sg + 4 <= 6: dma_block(sg + 4)
    import copy
    def snap(): return (list(A.hist), list(A.vm), list(A.lg))
    def restore(st): A.hist, A.vm, A.lg = list(st[0]), list(st[1]), list(st[2])
    snaps = {}
    for sg in range(7):
        if sg > 0:
            A('s_cmp_eq_u32 s23, %d' % sg)
            A('s_cbranch_scc1 L_k3_B%d' % sg)
        snaps[sg] = snap()
        body(sg, 0)
    A.label('L_k3_fin')
    ST(3)
    A('s_add_u32 s47, s21, 6'); A('s_lshr_b32 s48, s47, 6'); A('s_lshl_b32 s48, s48, 12'); A('s_and_b32 s47, s47, 63')
    A('s_mul_i32 s47, s47, 114688'); A('s_add_u32 s47, s47, s46'); A('s_add_u32 s47, s47, s48')
    for o in geglu_ops(ACC[0], TMP, OUTR, 11): A(o)
    A('buffer_store_dwordx4 %s, v6, s[28:31], s47 offen sc1' % v(OUTR, 4))
    ST(4)
    if STAMPS:
        A('s_waitcnt vmcnt(0)'); ST(5)
    ST.flush(28)
    A.label('L_k3_end')
    A('s_endpgm')
    restore(snaps[1])
    for sg in range(1, 7):
        A.label('L_k3_B%d' % sg)
        body(sg, 112)
    A('s_branch L_k3_fin')

def k4(A):
    header(A, 'k4_kernel')
    ST = Stamper(A, 3)
    ST(0)
    A('s_cmp_ge_u32 s2, 256')
    A('s_cbranch_scc1 L_k4_end')
    A('s_load_dwordx2 s[4:5], s[0:1], 64')
    A('s_load_dwordx2 s[8:9], s[0:1], 88')
    A('s_load_dwordx2 s[6:7], s[0:1], 104')
    A('v_lshrrev_b32 v2, 6, v0')
    A('v_and_b32 v1, 63, v0')
    A('v_readfirstlane_b32 s20, v2')
    A('s_lshr_b32 s13, s2, 3')
    A('s_and_b32 s14, s2, 1')
    A('s_mul_i32 s15, s14, 30')
    A('s_add_u32 s15, s15, s13')
    A('s_mul_i32 s16, s14, 26')
    A('s_add_u32 s16, s16, 30')
    A('s_cmp_ge_u32 s15, s16')
    A('s_cbranch_scc1 L_k4_end')
    A('s_mul_i32 s16, s15, 37')
    A('s_lshr_b32 s16, s16, 8')
    A('s_mul_i32 s17, s16, 7')
    A('s_sub_u32 s22, s15, s17')
    A('s_and_b32 s12, s2, 6')
    A('s_lshl_b32 s12, s12, 2')
    A('s_add_u32 s21, s12, s16')
    A('s_lshr_b32 s17, s20, 1')
    A('s_and_b32 s18, s20, 1')
    A('v_lshrrev_b32 v3, 3, v1')
    A('v_and_b32 v4, 7, v1')
    A('v_and_b32 v5, 2, v3')
    A('v_lshlrev_b32 v5, 1, v5')
    A('v_xor_b32 v4, v4, v5')
    A('v_mul_u32_u24 v3, 896, v3')
    A('v_lshl_add_u32 v3, v4, 4, v3')
    A('v_lshlrev_b32 v6, 4, v1')
    A('v_bfe_u32 v9, v1, 2, 2')
    A('v_lshrrev_b32 v10, 5, v1')
    A('v_lshl_add_u32 v10, v10, 3, v9')
    A('v_lshlrev_b32 v7, 7, v10')
    A('v_bfe_u32 v10, v1, 4, 1')
    A('v_and_b32 v9, 2, v9')
    A('v_xor_b32 v9, v9, v10')
    A('s_lshl_b32 s19, s18, 1')
    A('v_xor_b32 v9, s19, v9')
    A('v_lshl_add_u32 v7, v9, 5, v7')
    A('v_and_b32 v9, 1, v1')
    A('v_bfe_u32 v10, v1, 1, 1')
    A('v_lshl_add_u32 v9, v9, 1, v10')
    A('v_lshl_add_u32 v7, v9, 3, v7')
    A('s_mul_i32 s40, s20, 28672')
    A('v_add_u32 v7, s40, v7')
    A('v_xor_b32 v8, 64, v7')
    A('s_lshl_b32 s41, s21, 1')
    A('s_add_u32 s41, s41, s17')
    A('s_xor_b32 s42, s41, 1')
    A('s_mul_i32 s43, s41, 114688')
    A('s_mul_i32 s44, s42, 114688')
    A('s_lshl_b32 s19, s20, 10')
    A('s_add_u32 s19, s19, 0x%x' % WS_ACT)
    A('s_add_u32 s43, s43, s19')
    A('s_add_u32 s44, s44, s19')
    A('s_mul_i32 s45, s20, %d' % (16 * 896))
    A('s_lshl_b32 s19, s22, 7')
    A('s_add_u32 s45, s45, s19')
    A('s_waitcnt lgkmcnt(0)')
    ST(1)
    srd(A, 24, 4, 1792 * 896)
    srd(A, 28, 6, 0x1000000)
    srd(A, 32, 8, 1835008)
    def wd_round(lab):
        A('s_mov_b32 s46, s40')
        A('s_add_u32 s47, s40, 28672')
        A.label(lab)
        A('s_mov_b32 m0, s46')
        A('s_add_u32 s48, s45, %d' % (8 * 896))
        A('buffer_load_dwordx4 v3, s[24:27], s45 offen lds')
        A('s_add_u32 m0, s46, 1024')
        A('s_add_u32 s46, s46, 2048')
        A('buffer_load_dwordx4 v3, s[24:27], s48 offen lds')
        A('s_add_u32 s45, s45, %d' % (64 * 896))
        A('s_cmp_lt_u32 s46, s47')
        A('s_cbranch_scc1 %s' % lab)
        A.vm = ['wd'] * 28
    def wd_regs(r):
        for kk in range(14):
            for ct in range(2):
                for hf in range(2):
                    A('ds_read_b64_tr_b16 %s, %s offset:%d' % (a_(112 * r + 8 * kk + 4 * ct + 2 * hf, 2), v(7 + ct), 2048 * kk + 512 * hf))
        A('s_waitcnt lgkmcnt(0)')
    AF = 96; NA = 16
    def act_load(kk):
        for tb in range(2):
            A('buffer_load_dwordx4 %s, v6, s[28:31], %s offen sc1' % (v(AF + 8 * (kk % NA) + 4 * tb, 4), s(43 + tb)), tag='a%d' % kk)
        A('s_add_u32 s43, s43, 4096')
        A('s_add_u32 s44, s44, 4096')
    wd_round('L_k4_r0')
    for kk in range(14): act_load(kk)
    A.wait_vm('wd')
    wd_regs(0)
    old = [t for t in A.vm]
    wd_round('L_k4_r1')
    A.vm = old + ['wd'] * 28
    ST(2)
    ACC = 32
    def mm(kk):
        A.wait_vm('a%d' % kk)
        for tb in range(2):
            for ct in range(2):
                acc = ACC + 16 * (2 * tb + ct)
                A('v_mfma_f32_32x32x16_bf16 %s, %s, %s, %s' % (v(acc, 16), a_(8 * kk + 4 * ct, 4), v(AF + 8 * (kk % NA) + 4 * tb, 4), '0' if kk == 0 else v(acc, 16)))
    for kk in range(14):
        mm(kk)
        if kk >= 2: act_load(kk + 12)
    act_load(26); act_load(27)
    A('s_mul_i32 s50, s41, 28672')
    A('s_lshl_b32 s51, s22, 12')
    A('s_add_u32 s50, s50, s51')
    A('s_lshl_b32 s51, s18, 11')
    A('s_add_u32 s50, s50, s51')
    A('s_add_u32 s50, s50, 0x%x' % WS_X2)
    A.wait_vm('wd')
    for g in range(2):
        A('buffer_load_dwordx4 %s, v6, s[28:31], s50 offen offset:%d sc1' % (v(224 + 4 * g, 4), 1024 * g), tag='ep')
    A('v_lshrrev_b32 v9, 5, v1')
    A('v_lshlrev_b32 v10, 5, v9')
    A('s_lshl_b32 s51, s22, 8')
    A('s_lshl_b32 s52, s18, 7')
    A('s_add_u32 s51, s51, s52')
    A('s_add_u32 s51, s51, 0x%x' % (WS_MOD + 5 * 1792))
    for g in range(2):
        for h in range(2):
            A('buffer_load_dwordx4 %s, v10, s[28:31], s51 offen offset:%d sc1' % (v(232 + 8 * g + 4 * h, 4), 64 * g + 16 * h), tag='ep')
    wd_regs(1)
    A('v_bfe_u32 v12, v1, 3, 2')
    A('s_lshl_b32 s52, s41, 2')
    A('v_add_u32 v12, s52, v12')
    A('v_lshrrev_b32 v13, 3, v12')
    A('v_and_b32 v14, 7, v12')
    A('v_lshl_add_u32 v13, v14, 8, v13')
    A('v_and_b32 v14, 0xfc, v12')
    A('v_cmp_eq_u32 vcc, 4, v14')
    A('v_subrev_u32 v14, 992, v13')
    A('v_cndmask_b32 v13, v13, v14, vcc')
    A('v_bfe_u32 v14, v1, 1, 2')
    A('v_lshl_add_u32 v13, v14, 6, v13')
    A('v_sub_u32 v14, 2048, v13')
    A('v_cmp_eq_u32 vcc, 0, v13')
    A('v_mov_b32 v15, 1024')
    A('v_cndmask_b32 v14, v14, v15, vcc')
    A('v_and_b32 v15, 1, v1')
    A('v_cmp_eq_u32 vcc, 1, v15')
    A('v_cndmask_b32 v13, v13, v14, vcc')
    A('v_mul_u32_u24 v13, 896, v13')
    A('v_lshl_add_u32 v13, v9, 4, v13')
    A('s_lshl_b32 s53, s22, 7')
    A('s_lshl_b32 s52, s18, 6')
    A('s_add_u32 s53, s53, s52')
    for kk in range(14, 28): mm(kk)
    ST(3)
    A('s_barrier')
    for n in range(1, 4):
        A('s_xor_b32 s54, s20, %d' % n)
        A('s_mul_i32 s54, s54, 12288')
        A('v_add_u32 %s, s54, v6' % v(15 + n))
    for n in range(1, 4):
        for q in range(4):
            A('ds_write_b128 %s, %s offset:%d' % (v(15 + n), v(ACC + 16 * n + 4 * q, 4), 4096 * (n - 1) + 1024 * q))
    A('s_mul_i32 s54, s20, 12288')
    A('v_add_u32 v16, s54, v6') if False else None
    A('v_add_u32 v19, s54, v6')
    A.wait_vm('ep')
    for i in range(8):
        A('v_lshlrev_b32 %s, 16, %s' % (v(160 + 2 * i), v(224 + i)))
        A('v_and_b32 %s, 0xffff0000, %s' % (v(161 + 2 * i), v(224 + i)))
    for i in range(16): A('v_and_b32 %s, 0xffff0000, %s' % (v(232 + i), v(232 + i)))
    A('s_waitcnt lgkmcnt(0)')
    A('s_barrier')
    for q in range(4):
        for n in range(3):
            A('ds_read_b128 %s, v19 offset:%d' % (v(96 + 16 * n + 4 * q, 4), 4096 * n + 1024 * q), tag='p%d' % q)
    for q in range(4):
        A.wait_lg('p%d' % q)
        for p in range(2):
            r = 4 * q + 2 * p
            A('v_pk_add_f32 %s, %s, %s' % (v(ACC + r, 2), v(ACC + r, 2), v(96 + r, 2)))
            A('v_pk_add_f32 %s, %s, %s' % (v(112 + r, 2), v(112 + r, 2), v(128 + r, 2)))
        for p in range(2):
            r = 4 * q + 2 * p
            A('v_pk_add_f32 %s, %s, %s' % (v(ACC + r, 2), v(ACC + r, 2), v(112 + r, 2)))
        for p in range(2):
            r = 4 * q + 2 * p
            A('v_pk_fma_f32 %s, %s, %s, %s' % (v(ACC + r, 2), v(ACC + r, 2), v(232 + r, 2), v(160 + r, 2)))
        for p in range(2):
            r = 4 * q + 2 * p
            A('v_cvt_pk_bf16_f32 %s, %s, %s' % (v(20 + 2 * q + p), v(ACC + r), v(ACC + r + 1)))
        if q & 1:
            A('buffer_store_dwordx4 %s, v13, s[32:35], s53 offen offset:%d' % (v(20 + 4 * (q >> 1), 4), 32 * (q >> 1)))
    ST(4)
    if STAMPS:
        A('s_waitcnt vmcnt(0)'); ST(5)
    ST.flush(28)
    A.label('L_k4_end')
    A('s_endpgm')
```

```python
from gen1 import kd
import gen_k2, gen_k34
def add(A, launches, kds):
    gen_k2.k2(A); launches.append(('k2_kernel', 256, 256, 26112)); kds.append(kd('k2_kernel', 256, 256))
    gen_k34.k3(A); launches.append(('k3_kernel', 256, 256, 143360)); kds.append(kd('k3_kernel', 512, 256))
    gen_k34.k4(A); launches.append(('k4_kernel', 256, 256, 114688)); kds.append(kd('k4_kernel', 512, 256))
```

```python
import sys, math
from asmlib import *

NAME = 'adaLN_cond__spectral_fnet__geglu_ffn__prompt'
WS_U, WS_MOD, WS_H2, WS_X2, WS_ACT, WS_ST = 0x0, 0x200000, 0x300000, 0x500000, 0x700000, 0xF00000
STAMPS = 'stamps' in sys.argv
LOG2E = 1.4426950408889634

def srd(A, d, blo, nbytes):
    A('s_mov_b32 %s, %s' % (s(d), s(blo)))
    A('s_and_b32 %s, %s, 0xffff' % (s(d + 1), s(blo + 1)))
    A('s_mov_b32 %s, 0x%x' % (s(d + 2), nbytes))
    A('s_mov_b32 %s, 0x20000' % s(d + 3))

class Stamper:
    def __init__(self, A, k):
        self.A = A; self.k = k; self.used = []
    def __call__(self, i):
        if not STAMPS: return
        self.A('s_memrealtime %s' % s(70 + 2 * i, 2))
        if i not in self.used: self.used.append(i)
    def flush(self, wsS, used=None):
        if not STAMPS: return
        A = self.A
        lab = 'L_st_%d_%d' % (self.k, len(A.lines))
        A('s_waitcnt lgkmcnt(0)')
        A('s_cmp_lg_u32 s20, 0')
        A('s_cbranch_scc1 %s' % lab)
        A('s_mov_b64 exec, 1')
        A('s_lshl_b32 s3, s2, 7')
        A('s_add_u32 s3, s3, 0x%x' % (WS_ST + self.k * 320 * 128))
        A('v_mov_b32 v2, 0')
        for i in (used or self.used):
            A('v_mov_b32 v4, %s' % s(70 + 2 * i))
            A('v_mov_b32 v5, %s' % s(71 + 2 * i))
            A('buffer_store_dwordx2 v[4:5], v2, %s, s3 offen offset:%d' % (s(wsS, 4), 8 * i))
        A.label(lab)

def header(A, name):
    A.raw('.globl %s' % name)
    A.raw('.p2align 8')
    A.raw('.type %s,@function' % name)
    A.label(name)
    A.hist = []; A.vm = []; A.lg = []

def kd(name, vg, acc, sg=102):
    return '''.p2align 6
.amdhsa_kernel %s
  .amdhsa_next_free_vgpr %d
  .amdhsa_next_free_sgpr %d
  .amdhsa_accum_offset %d
  .amdhsa_group_segment_fixed_size 0
  .amdhsa_kernarg_size 112
  .amdhsa_user_sgpr_count 2
  .amdhsa_user_sgpr_kernarg_segment_ptr 1
  .amdhsa_system_sgpr_workgroup_id_x 1
.end_amdhsa_kernel
''' % (name, vg, sg, acc)

def k1(A):
    header(A, 'k1_kernel')
    ST = Stamper(A, 0)
    ST(0)
    A('s_cmp_ge_u32 s2, 256')
    A('s_cbranch_scc1 L_k1_end')
    A('s_load_dwordx2 s[4:5], s[0:1], 0')
    A('s_load_dwordx4 s[8:11], s[0:1], 72')
    A('s_load_dwordx2 s[6:7], s[0:1], 104')
    A('v_lshrrev_b32 v2, 6, v0')
    A('v_and_b32 v1, 63, v0')
    A('v_readfirstlane_b32 s20, v2')
    A('s_and_b32 s12, s2, 7')
    A('s_lshr_b32 s13, s2, 3')
    A('s_mov_b32 s40, 0x1234')
    A('s_cmp_ge_u32 s13, 16')
    A('s_cbranch_scc1 L_k1_mod')
    A('s_lshr_b32 s21, s13, 2')
    A('s_lshl_b32 s14, s12, 2')
    A('s_add_u32 s21, s21, s14')
    A('s_and_b32 s22, s13, 3')
    A('v_lshrrev_b32 v3, 3, v1')
    A('v_and_b32 v4, 7, v1')
    A('v_lshrrev_b32 v5, 4, v1')
    A('v_and_b32 v6, 15, v1')
    A('v_mul_u32_u24 v7, %d, v3' % (32 * 896))
    A('v_lshl_add_u32 v7, v4, 4, v7')
    A('s_mul_i32 s14, s21, 896')
    A('s_mul_i32 s15, s20, %d' % (16 * 32 * 896))
    A('s_add_u32 s14, s14, s15')
    A('s_add_u32 s15, s14, %d' % (8 * 32 * 896))
    A('v_lshrrev_b32 v8, 1, v6')
    A('v_xor_b32 v8, v8, v5')
    A('v_xor_b32 v9, 4, v8')
    A('v_min_u32 v8, 6, v8')
    A('v_min_u32 v9, 6, v9')
    A('v_and_b32 v10, 1, v6')
    A('v_lshlrev_b32 v10, 4, v10')
    A('v_mul_u32_u24 v11, %d, v5' % (32 * 896))
    A('v_add_u32 v10, v10, v11')
    A('v_lshl_add_u32 v8, v8, 7, v10')
    A('v_lshl_add_u32 v9, v9, 7, v10')
    A('s_lshl_b32 s16, s22, 5')
    A('s_add_u32 s16, s16, s14')
    A('s_lshl_b32 s17, s20, 12')
    A('s_waitcnt lgkmcnt(0)')
    ST(1)
    srd(A, 24, 4, 1835008)
    for i in range(4):
        A('s_mov_b32 m0, s17')
        if i < 3: A('s_add_u32 s17, s17, 1024')
        A('buffer_load_dwordx4 %s, s[24:27], s16 offen lds' % v(8 + (i & 1)), tag='dma')
        if i < 3: A('s_add_u32 s16, s16, %d' % (4 * 32 * 896))
    XR = 64
    for a in range(2):
        for q in range(7):
            A('buffer_load_dwordx4 %s, v7, s[24:27], %s offen offset:%d' % (v(XR + (a * 7 + q) * 4, 4), s(14 + a), 128 * q), tag='x%d' % (a * 7 + q))
    srd(A, 28, 6, 0x1000000)
    A('s_lshl_b32 s18, s20, 4')
    A('v_add_u32 v12, s18, v6')
    A('v_lshrrev_b32 v13, 1, v12')
    A('v_and_b32 v14, 1, v12')
    A('v_cmp_eq_u32 vcc, 1, v12')
    A('v_cndmask_b32 v13, v13, 32, vcc')
    A('v_cndmask_b32 v14, v14, 0, vcc')
    A('v_cvt_f32_u32 v13, v13')
    A('v_cvt_f32_u32 v14, v14')
    A('v_mul_f32 v13, %s, v13' % fhex(1 / 64))
    A('v_mul_f32 v14, 0.25, v14' .replace('0.25', fhex(0.25)))
    A('v_cvt_f32_u32 v15, v5')
    A('v_mul_f32 v15, 4.0, v15')
    A('v_fma_f32 v14, v13, v15, v14')
    for ks in range(2):
        for i in range(8):
            c = 32 * ks + 16 * (i >> 2) + (i & 3)
            A('v_fmamk_f32 %s, v13, %s, v14' % (v(32 + ks * 8 + i), fhex(float(c))))
    for i in range(16):
        A('v_cos_f32 %s, %s' % (v(32 + i), v(32 + i)))
    A('v_lshlrev_b32 v12, 2, v5')
    A('v_cmp_eq_u32 vcc, v12, v6')
    A('v_mov_b32 v12, 0x3f803f80')
    for i in range(4): A('v_cndmask_b32 %s, 0, v12, vcc' % v(20 + i))
    A('v_lshrrev_b32 v12, 2, v1')
    A('v_and_b32 v13, 7, v12')
    A('v_lshlrev_b32 v12, 8, v12')
    A('v_lshl_add_u32 v12, v13, 5, v12')
    A('v_and_b32 v13, 3, v1')
    A('v_lshl_add_u32 v120, v13, 3, v12')
    for q in range(1, 7): A('v_xor_b32 %s, %d, v120' % (v(120 + q), q * 32))
    A('v_lshrrev_b32 v12, 2, v4')
    A('v_lshl_add_u32 v13, v12, 3, v3')
    A('v_add_u32 v16, s18, v13')
    A('v_lshlrev_b32 v16, 2, v16')
    A('v_lshrrev_b32 v12, 2, v13')
    A('v_and_b32 v13, 3, v13')
    A('v_lshl_add_u32 v13, v12, 3, v13')
    A('s_lshr_b32 s19, s20, 1')
    A('s_lshl_b32 s19, s19, 5')
    A('s_and_b32 s23, s20, 1')
    A('s_lshl_b32 s23, s23, 2')
    A('s_add_u32 s19, s19, s23')
    A('v_add_lshl_u32 v17, v13, s19, 1')
    A('v_lshlrev_b32 v18, 4, v5')
    A('v_lshlrev_b32 v19, 17, v5')
    A('v_lshl_add_u32 v19, v6, 4, v19')
    A('s_lshl_b32 s44, s20, 19')
    A('s_lshl_b32 s19, s21, 10')
    A('s_add_u32 s44, s44, s19')
    A('s_lshl_b32 s19, s22, 8')
    A('s_add_u32 s44, s44, s19')
    A('s_add_u32 s45, s44, 32768')
    A('s_add_u32 s46, s44, 65536')
    A('s_add_u32 s47, s44, 98304')
    A('s_lshl_b32 s41, s40, 16')
    for i in range(4): A('v_mov_b32 %s, 0' % v(240 + i))
    A('v_cmp_lt_u32 s[42:43], 3, v4')
    A.wait_vm('dma')
    A('s_barrier')
    ST(2)
    BF = 128
    for q in range(7):
        for ks in range(2):
            for hf in range(2):
                A('ds_read_b64_tr_b16 %s, %s offset:%d' % (v(BF + (q * 2 + ks) * 4 + 2 * hf, 2), v(120 + q), 8192 * ks + 4096 * hf), tag='bf')
    for a in range(2):
        for q in range(7):
            n = a * 7 + q
            A.wait_vm('x%d' % n)
            r = XR + n * 4
            A('v_mfma_f32_16x16x32_bf16 %s, v[20:23], %s, %s' % (v(232 + 4 * a, 4), v(r, 4), '0' if q == 0 else v(232 + 4 * a, 4)))
            for i in range(4):
                A('v_dot2c_f32_bf16 %s, %s, %s' % (v(240 + 2 * a + (i & 1)), v(r + i), v(r + i)))
    ST(3)
    A('v_add_f32 v240, v240, v241')
    A('v_add_f32 v242, v242, v243')
    A('v_cndmask_b32 v244, v242, v240, s[42:43]')
    A('v_cndmask_b32 v245, v240, v242, s[42:43]')
    A('v_cndmask_b32 v246, v236, v232, s[42:43]')
    A('v_cndmask_b32 v247, v232, v236, s[42:43]')
    A('v_add_f32_dpp v245, v244, v245 row_half_mirror row_mask:0xf bank_mask:0xf')
    A('v_add_f32_dpp v247, v246, v247 row_half_mirror row_mask:0xf bank_mask:0xf')
    A('v_add_f32_dpp v245, v245, v245 quad_perm:[1,0,3,2] row_mask:0xf bank_mask:0xf')
    A('v_add_f32_dpp v247, v247, v247 quad_perm:[1,0,3,2] row_mask:0xf bank_mask:0xf')
    A('v_add_f32_dpp v245, v245, v245 quad_perm:[2,3,0,1] row_mask:0xf bank_mask:0xf')
    A('v_add_f32_dpp v247, v247, v247 quad_perm:[2,3,0,1] row_mask:0xf bank_mask:0xf')
    A('v_mul_f32 v247, %s, v247' % fhex(-1 / 448))
    A('v_mul_f32 v245, %s, v245' % fhex(1 / 448))
    A('v_fma_f32 v245, -v247, v247, v245')
    A('v_cvt_pk_bf16_f32 v246, v247, v247')
    A('v_max_f32 v245, 0, v245')
    A('v_lshlrev_b32 v246, 16, v246')
    A('v_add_f32 v245, %s, v245' % fhex(1e-5))
    A('v_sub_f32 v247, v247, v246')
    A('v_rsq_f32 v245, v245')
    A('v_cvt_pk_bf16_f32 v246, v246, v247')
    A('s_mov_b32 s48, 0x11111111')
    A('s_mov_b32 exec_lo, s48')
    A('s_mov_b32 exec_hi, s48')
    A('ds_write_b32 v16, v245 offset:16384')
    A('ds_write_b16 v17, v246 offset:16640')
    A('ds_write_b16_d16_hi v17, v246 offset:16768')
    A('s_mov_b64 exec, -1')
    A('s_waitcnt lgkmcnt(0)')
    A('s_barrier')
    for i in range(4):
        A('ds_read_b128 %s, v18 offset:%d' % (v(48 + 4 * i, 4), 16384 + 64 * i), tag='r%d' % i)
    for ks in range(2):
        A('ds_read_b128 %s, v18 offset:%d' % (v(8 + 4 * ks, 4), 16640 + 64 * ks), tag='mh')
    for ks in range(2):
        A('ds_read_b128 %s, v18 offset:%d' % (v(248 + 4 * ks, 4), 16768 + 64 * ks), tag='ml')
    for i in range(4):
        A.wait_lg('r%d' % i)
        for p in range(2):
            r = 4 * i + 2 * p
            A('v_pk_mul_f32 %s, %s, %s' % (v(32 + r, 2), v(32 + r, 2), v(48 + r, 2)))
        for p in range(2):
            r = 4 * i + 2 * p
            A('v_cvt_pk_bf16_f32 %s, %s, %s' % (v(24 + 2 * i + p), v(32 + r), v(33 + r)))
    A('s_waitcnt lgkmcnt(0)')
    A('v_mfma_f32_16x16x32_bf16 v[184:187], v[24:27], v[8:11], 0')
    A('v_mfma_f32_16x16x32_bf16 v[184:187], v[28:31], v[12:15], v[184:187]')
    A('v_mfma_f32_16x16x32_bf16 v[184:187], v[24:27], v[248:251], v[184:187]')
    A('v_mfma_f32_16x16x32_bf16 v[184:187], v[28:31], v[252:255], v[184:187]')
    DQ = 188
    for q in range(7):
        A('v_mfma_f32_16x16x32_bf16 %s, v[24:27], %s, v[184:187]' % (v(DQ + 4 * q, 4), v(BF + q * 8, 4)))
    for q in range(7):
        A('v_mfma_f32_16x16x32_bf16 %s, v[28:31], %s, %s' % (v(DQ + 4 * q, 4), v(BF + q * 8 + 4, 4), v(DQ + 4 * q, 4)))
    OG = 216
    for p in range(3):
        for i in range(4):
            A('v_cvt_pk_bf16_f32 %s, %s, %s' % (v(OG + 4 * i + p), v(DQ + 8 * p + i), v(DQ + 8 * p + 4 + i)))
    for i in range(4):
        A('v_cvt_pk_bf16_f32 %s, %s, 0' % (v(OG + 4 * i + 3), v(DQ + 24 + i)))
    for i in range(4):
        A('v_or_b32 %s, s41, %s' % (v(OG + 4 * i + 3), v(OG + 4 * i + 3)))
        A('buffer_store_dwordx4 %s, v19, s[28:31], %s offen sc1' % (v(OG + 4 * i, 4), s(44 + i)))
    ST(4)
    if STAMPS:
        A('s_waitcnt vmcnt(0)'); ST(5)
    ST.flush(28)
    A('s_endpgm')
    A.label('L_k1_mod'); A.hist = []; A.vm = []; A.lg = []
    A('s_sub_u32 s13, s13, 16')
    A('s_lshl_b32 s13, s13, 3')
    A('s_add_u32 s21, s13, s12')
    A('s_cmp_ge_u32 s21, 42')
    A('s_cbranch_scc1 L_k1_end')
    A('v_lshrrev_b32 v3, 3, v1')
    A('v_and_b32 v4, 7, v1')
    A('v_lshrrev_b32 v5, 1, v3')
    A('v_lshlrev_b32 v5, 1, v5')
    A('v_xor_b32 v5, v5, v4')
    A('v_mul_u32_u24 v7, 5376, v3')
    A('v_lshl_add_u32 v7, v5, 4, v7')
    A('s_mul_i32 s14, s20, %d' % (14 * 8 * 5376))
    A('s_lshl_b32 s15, s21, 7')
    A('s_add_u32 s14, s14, s15')
    A('s_mul_i32 s17, s20, %d' % (14 * 1024))
    A('v_lshlrev_b32 v8, 2, v0')
    A('s_waitcnt lgkmcnt(0)')
    ST(1)
    srd(A, 32, 8, 896)
    srd(A, 36, 10, 448 * 5376)
    A('buffer_load_dword v9, v8, s[32:35], 0 offen', tag='c')
    for i in range(14):
        A('s_mov_b32 m0, s17')
        if i < 13: A('s_add_u32 s17, s17, 1024')
        A('buffer_load_dwordx4 v7, s[36:39], s14 offen lds', tag='dma')
        if i < 13: A('s_add_u32 s14, s14, %d' % (8 * 5376))
    srd(A, 28, 6, 0x1000000)
    A('v_and_b32 v10, 0xf1, v0')
    A('v_bfe_u32 v11, v0, 1, 2')
    A('v_lshl_add_u32 v10, v11, 2, v10')
    A('v_bfe_u32 v11, v0, 3, 1')
    A('v_lshl_add_u32 v10, v11, 1, v10')
    A('v_lshlrev_b32 v10, 2, v10')
    A('v_lshrrev_b32 v12, 2, v1')
    A('v_bfe_u32 v13, v12, 1, 2')
    A('v_xor_b32 v13, s20, v13')
    A('v_lshlrev_b32 v12, 7, v12')
    A('v_lshl_add_u32 v12, v13, 5, v12')
    A('v_and_b32 v13, 3, v1')
    A('v_lshl_add_u32 v12, v13, 3, v12')
    A('v_lshrrev_b32 v14, 4, v1')
    A('v_lshlrev_b32 v14, 4, v14')
    A('s_mul_i32 s18, s21, 37')
    A('s_lshr_b32 s18, s18, 8')
    A('s_mov_b32 s19, 0')
    A('s_cmp_eq_u32 s18, 1')
    A('s_cselect_b32 s19, 1.0, s19')
    A('s_cmp_eq_u32 s18, 4')
    A('s_cselect_b32 s19, 1.0, s19')
    A('s_lshl_b32 s22, s21, 8')
    A('s_lshl_b32 s23, s20, 6')
    A('s_add_u32 s22, s22, s23')
    A('s_add_u32 s22, s22, 0x%x' % WS_MOD)
    A('v_lshlrev_b32 v15, 2, v1')
    A.wait_vm('c')
    A('v_lshlrev_b32 v16, 16, v9')
    A('v_and_b32 v17, 0xffff0000, v9')
    A('v_mul_f32 v18, %s, v16' % fhex(-LOG2E))
    A('v_mul_f32 v19, %s, v17' % fhex(-LOG2E))
    A('v_exp_f32 v18, v18')
    A('v_exp_f32 v19, v19')
    A('v_add_f32 v18, 1.0, v18')
    A('v_add_f32 v19, 1.0, v19')
    A('v_rcp_f32 v18, v18')
    A('v_rcp_f32 v19, v19')
    A('v_mul_f32 v16, v16, v18')
    A('v_mul_f32 v17, v17, v19')
    A('v_cvt_pk_bf16_f32 v16, v16, v17')
    A('ds_write_b32 v10, v16 offset:57344')
    A('s_waitcnt vmcnt(0) lgkmcnt(0)')
    A('s_barrier')
    ST(2)
    for ks in range(14):
        A('ds_read_b128 %s, v14 offset:%d' % (v(64 + 4 * ks, 4), 57344 + 64 * ks), tag='k%d' % ks)
        for hf in range(2):
            A('ds_read_b64_tr_b16 %s, v12 offset:%d' % (v(128 + 4 * ks + 2 * hf, 2), 4096 * ks + 2048 * hf), tag='k%d' % ks)
        if ks >= 4:
            kk = ks - 4
            A.wait_lg('k%d' % kk)
            A('v_mfma_f32_16x16x32_bf16 v[20:23], %s, %s, %s' % (v(64 + 4 * kk, 4), v(128 + 4 * kk, 4), '0' if kk == 0 else 'v[20:23]'))
    for kk in range(10, 14):
        A.wait_lg('k%d' % kk)
        A('v_mfma_f32_16x16x32_bf16 v[20:23], %s, %s, v[20:23]' % (v(64 + 4 * kk, 4), v(128 + 4 * kk, 4)))
    A('v_cvt_pk_bf16_f32 v20, v20, v20')
    A('v_lshlrev_b32 v20, 16, v20')
    A('v_add_f32 v20, s19, v20')
    A('v_cvt_pk_bf16_f32 v20, v20, v20')
    A('v_lshlrev_b32 v20, 16, v20')
    A('v_or_b32 v20, s40, v20')
    A('s_mov_b64 exec, 0xffff')
    A('buffer_store_dword v20, v15, s[28:31], s22 offen sc1')
    A('s_mov_b64 exec, -1')
    ST(6)
    if STAMPS:
        A('s_waitcnt vmcnt(0)'); ST(7)
    ST.flush(28, [0, 1, 2, 6, 7])
    A.label('L_k1_end')
    A('s_endpgm')

if __name__ == '__main__':
    import gen_rest
    A = Asm()
    launches = [('k1_kernel', 256, 256, 58368)]
    kds = [kd('k1_kernel', 256, 256)]
    A.raw('.amdgcn_target "amdgcn-amd-amdhsa--gfx950"')
    A.raw('.text')
    k1(A)
    gen_rest.add(A, launches, kds)
    head = ''.join('; @launch kernel=%s grid=(%d,1,1) block=(%d,1,1) lds=%d\n' % l for l in launches)
    out = head + A.text() + '.section .rodata,"a"\n' + ''.join(kds)
    open(sys.argv[1], 'w').write(out)
    print('instr', A.ninstr, 'nops', A.nops, 'bytes', len(out))
```

```python
import sys
WS_ST=0xF00000
def mk(src, dst, i, op):
    s=open(src).read()
    lines=s.split('\n')
    lines[0] = lines[0].replace('; @launch ', '; @launch kernel=adaLN_cond__spectral_fnet__geglu_ffn__prompt_kernel ')
    lines.insert(1,'; @launch kernel=kp_kernel grid=(1,1,1) block=(64,1,1) lds=0')
    s='\n'.join(lines)
    red=''
    for d in ('quad_perm:[1,0,3,2]','quad_perm:[2,3,0,1]','row_half_mirror','row_mirror'):
        red+=' s_nop 1\n v_%s_i32_dpp v2, v2, v2 %s row_mask:0xf bank_mask:0xf\n' % (op,d)
    fix = 'v_mov_b32 v7, 0x80000000' if op=='max' else 'v_mov_b32 v7, 0x7fffffff'
    sub=''.join(' v_cmp_eq_u32 vcc, 0, v%d\n v_subrev_u32 v%d, s8, v%d\n s_nop 1\n v_cndmask_b32 v%d, v%d, v7, vcc\n' % (r,r,r,r,r) for r in (2,3,4,5))
    code='''.globl kp_kernel
.p2align 8
.type kp_kernel,@function
kp_kernel:
 s_load_dwordx2 s[6:7], s[0:1], 104
 s_waitcnt lgkmcnt(0)
 s_add_u32 s6, s6, 0x%x
 s_addc_u32 s7, s7, 0
 s_load_dword s8, s[6:7], 0
 v_lshlrev_b32 v1, 9, v0
 global_load_dword v2, v1, s[6:7] offset:%d
 global_load_dword v3, v1, s[6:7] offset:%d
 global_load_dword v4, v1, s[6:7] offset:%d
 global_load_dword v5, v1, s[6:7] offset:%d
 %s
 s_waitcnt vmcnt(0) lgkmcnt(0)
%s
 v_%s_i32 v2, v2, v3
 v_%s_i32 v4, v4, v5
 v_%s_i32 v2, v2, v4
%s
 s_nop 1
 v_readlane_b32 s12, v2, 0
 v_readlane_b32 s13, v2, 16
 v_readlane_b32 s14, v2, 32
 v_readlane_b32 s15, v2, 48
 s_nop 3
 s_%s_i32 s12, s12, s13
 s_%s_i32 s14, s14, s15
 s_%s_i32 s12, s12, s14
 s_add_u32 s8, s8, s12
 s_add_u32 s8, s8, 10000
 s_mov_b32 s12, 0
L_kp:
 s_memrealtime s[10:11]
 s_waitcnt lgkmcnt(0)
 s_add_u32 s12, s12, 1
 s_cmp_gt_u32 s12, 0x100000
 s_cbranch_scc1 L_kpe
 s_sub_u32 s10, s10, s8
 s_cmp_lt_i32 s10, 0
 s_cbranch_scc1 L_kp
L_kpe:
 s_endpgm
''' % (WS_ST, 8*i, 8*i+128, 8*i+256, 8*i+384, fix, sub, op,op,op, red, op,op,op)
    s=s.replace('.section .rodata,"a"',code+'.section .rodata,"a"',1)
    s+='''.p2align 6
.amdhsa_kernel kp_kernel
  .amdhsa_next_free_vgpr 8
  .amdhsa_next_free_sgpr 24
  .amdhsa_accum_offset 8
  .amdhsa_group_segment_fixed_size 0
  .amdhsa_kernarg_size 112
  .amdhsa_user_sgpr_count 2
  .amdhsa_user_sgpr_kernarg_segment_ptr 1
  .amdhsa_system_sgpr_workgroup_id_x 1
.end_amdhsa_kernel
'''
    open(dst,'w').write(s)
src=sys.argv[1]
for n,a in enumerate(sys.argv[2:]):
    mk(src,'../probe%d.s'%n,int(a[3:]),a[:3])
```

```python
import sys
WS_ST=0xF00000
def red(reg, op):
    r=''
    ins = {'max':'v_max_i32','min':'v_min_i32','add':'v_add_u32'}[op]
    for d in ('quad_perm:[1,0,3,2]','quad_perm:[2,3,0,1]','row_half_mirror','row_mirror'):
        r+=' s_nop 1\n %s_dpp v%d, v%d, v%d %s row_mask:0xf bank_mask:0xf\n' % (ins,reg,reg,reg,d)
    s={'max':'s_max_i32','min':'s_min_i32','add':'s_add_u32'}[op]
    r+=' s_nop 1\n v_readlane_b32 s12, v%d, 0\n v_readlane_b32 s13, v%d, 16\n v_readlane_b32 s14, v%d, 32\n v_readlane_b32 s15, v%d, 48\n s_nop 3\n %s s12, s12, s13\n %s s14, s14, s15\n %s s12, s12, s14\n' % (reg,reg,reg,reg,s,s,s)
    return r
def mk(src, dst, spec):
    op, i = spec[:3], int(spec[3:])
    s=open(src).read()
    lines=s.split('\n')
    lines[0] = lines[0].replace('; @launch ', '; @launch kernel=adaLN_cond__spectral_fnet__geglu_ffn__prompt_kernel ')
    lines.insert(1,'; @launch kernel=kp_kernel grid=(1,1,1) block=(64,1,1) lds=0')
    s='\n'.join(lines)
    off = 8*i if op != 'cnt' else 8*14 + (4 if i >= 2 else 0)
    c='''.globl kp_kernel
.p2align 8
.type kp_kernel,@function
kp_kernel:
 s_load_dwordx2 s[6:7], s[0:1], 104
 s_waitcnt lgkmcnt(0)
 s_add_u32 s6, s6, 0x%x
 s_addc_u32 s7, s7, 0
 s_load_dword s8, s[6:7], 0
 v_lshlrev_b32 v1, 9, v0
''' % WS_ST
    for k in range(4):
        c+=' global_load_dword v%d, v1, s[6:7] offset:%d\n global_load_dword v%d, v1, s[6:7] offset:%d\n' % (2+k, off+128*k, 8+k, 128*k)
    c+=' s_waitcnt vmcnt(0) lgkmcnt(0)\n'
    for k in range(4): c+=' v_subrev_u32 v%d, s8, v%d\n' % (8+k,8+k)
    c+=' v_min_i32 v8, v8, v9\n v_min_i32 v10, v10, v11\n v_min_i32 v8, v8, v10\n'+red(8,'min')+' s_add_u32 s8, s8, s12\n'
    if op=='cnt':
        for k in range(4):
            c+=' v_bfe_u32 v%d, v%d, %d, 16\n v_min_u32 v%d, 1, v%d\n' % (2+k,2+k,16*(i&1),2+k,2+k)
        c+=' v_add_u32 v2, v2, v3\n v_add_u32 v4, v4, v5\n v_add_u32 v2, v2, v4\n'+red(2,'add')+' s_lshl_b32 s12, s12, 4\n'
    else:
        fix={'max':'0x80000000','min':'0x7fffffff','avg':'0'}[op]
        c+=' v_mov_b32 v7, %s\n' % fix
        for r in (2,3,4,5): c+=' v_cmp_eq_u32 vcc, 0, v%d\n v_subrev_u32 v%d, s8, v%d\n s_nop 1\n v_cndmask_b32 v%d, v%d, v7, vcc\n' % (r,r,r,r,r)
        ins={'max':'v_max_i32','min':'v_min_i32','avg':'v_add_u32'}[op]
        c+=' %s v2, v2, v3\n %s v4, v4, v5\n %s v2, v2, v4\n' % (ins,ins,ins)+red(2,'add' if op=='avg' else op)
        c+=' s_lshr_b32 s12, s12, 4\n' if op=='avg' else ' s_lshl_b32 s12, s12, 4\n'
    c+=''' s_add_u32 s8, s8, s12
 s_add_u32 s8, s8, 10000
 s_mov_b32 s12, 0
L_kp:
 s_memrealtime s[10:11]
 s_waitcnt lgkmcnt(0)
 s_add_u32 s12, s12, 1
 s_cmp_gt_u32 s12, 0x100000
 s_cbranch_scc1 L_kpe
 s_sub_u32 s10, s10, s8
 s_cmp_lt_i32 s10, 0
 s_cbranch_scc1 L_kp
L_kpe:
 s_endpgm
'''
    s=s.replace('.section .rodata,"a"',c+'.section .rodata,"a"',1)
    s+='''.p2align 6
.amdhsa_kernel kp_kernel
  .amdhsa_next_free_vgpr 16
  .amdhsa_next_free_sgpr 24
  .amdhsa_accum_offset 16
  .amdhsa_group_segment_fixed_size 0
  .amdhsa_kernarg_size 112
  .amdhsa_user_sgpr_count 2
  .amdhsa_user_sgpr_kernarg_segment_ptr 1
  .amdhsa_system_sgpr_workgroup_id_x 1
.end_amdhsa_kernel
'''
    open(dst,'w').write(s)
src=sys.argv[1]
for n,a in enumerate(sys.argv[2:]): mk(src,'../probe%d.s'%n,a)
```
